```python
import torch

def _softmax(x, axis=-1):
    return torch.softmax(x, dim=axis)

def _gelu(x):
    return torch.nn.functional.gelu(x, approximate='tanh')

def _silu(x):
    return torch.nn.functional.silu(x)

def _sigmoid(x):
    return torch.sigmoid(x)

def _layernorm(x, axis=-1, eps=1e-05):
    m = x.mean(dim=axis, keepdim=True)
    v = x.var(dim=axis, keepdim=True, unbiased=False)
    return (x - m) / torch.sqrt(v + eps)

def _scatter_add(tgt, idx, src, axis=0):
    return tgt.clone().index_add_(axis, idx, src)

def _segment_sum(src, seg, n):
    out = torch.zeros((n,) + src.shape[1:], dtype=src.dtype)
    return out.index_add_(0, seg, src)

def _pad(x, pw):
    flat = tuple((v for pair in reversed(pw) for v in pair))
    return torch.nn.functional.pad(x, flat)
kernel_name = 'gather_scatter__tensor_product_equiv_tfn__graph'

def setup_inputs():

    _w = lambda a: (lambda t: t.to(torch.bfloat16) if t.is_floating_point() else t)(torch.as_tensor(a))
    N, deg, C, L, DE = (10000, 64, 64, 1, 16)
    E = N * deg
    M = (L + 1) ** 2
    src = (lambda lo, hi, *s: torch.randint(lo, hi, s))(0, N, E).to(torch.int64)
    dst = (lambda lo, hi, *s: torch.randint(lo, hi, s))(0, N, E).to(torch.int64)
    r = (lambda *s: torch.randn(*s, dtype=torch.bfloat16) * 0.05)(E, 3)
    r = r / (torch.linalg.norm(r, dim=-1, keepdim=True) + 1e-09)
    rx, ry, rz = (r[:, 0].clone(), r[:, 1].clone(), r[:, 2].clone())
    Ys = [torch.ones((E, 1), dtype=float)]
    if L >= 1:
        Ys.append(r.to(float))
    if L >= 2:
        Ys.append(torch.stack([2 * rx * ry, 2 * ry * rz, (3 * rz * rz - 1.0) / (lambda _x: torch.sqrt(torch.as_tensor(_x)))(3.0), 2 * rx * rz, rx * rx - ry * ry], dim=-1).to(float))
    for _l in range(3, L + 1):
        Ys.append(((lambda *s: torch.randn(*s, dtype=torch.bfloat16) * 0.05)(E, 2 * _l + 1) * 0.3).to(float))
    Y = torch.cat(Ys, dim=-1)
    cg = torch.zeros((M, M, M), dtype=float)
    off = [_l * _l for _l in range(L + 2)]
    for l1 in range(L + 1):
        for l2 in range(L + 1):
            for l3 in range(abs(l1 - l2), min(L, l1 + l2) + 1):
                d1, d2, d3 = (2 * l1 + 1, 2 * l2 + 1, 2 * l3 + 1)
                cg[off[l1]:off[l1 + 1], off[l2]:off[l2 + 1], off[l3]:off[l3 + 1]] = (lambda *s: torch.randn(*s, dtype=torch.bfloat16) * 0.05)(d1, d2, d3) / (lambda _x: torch.sqrt(torch.as_tensor(_x)))(float(d1 * d2))
    return {'x': _w((lambda *s: torch.randn(*s, dtype=torch.bfloat16) * 0.05)(N, C, M) * 0.2), 'src': _w(src), 'dst': _w(dst), 'Y': _w(Y), 'edge_feat': _w((lambda *s: torch.randn(*s, dtype=torch.bfloat16) * 0.05)(E, DE)), 'w_rad': _w((lambda *s: torch.randn(*s, dtype=torch.bfloat16) * 0.05)(DE, C) * (1.0 / max(1.0, DE) ** 0.5)), 'cg': _w(cg), 'w_mix': _w((lambda *s: torch.randn(*s, dtype=torch.bfloat16) * 0.05)(C, C) * (1.0 / max(1.0, C) ** 0.5))}

def reference(x, src, dst, Y, edge_feat, w_rad, cg, w_mix):
    N, C, M = (x.shape[0], x.shape[1], x.shape[2])
    R = _silu(edge_feat @ w_rad)
    xs = x[src]
    tp = torch.einsum('eci,ef,ifo->eco', xs, Y, cg)
    msg = R[:, :, None] * tp
    agg = _segment_sum(msg.reshape(-1, C * M), dst, N).reshape(N, C, M)
    return torch.einsum('ncm,cd->ndm', agg, w_mix)
```

```python
import argparse
import struct
import sys

NAME = "gather_scatter__tensor_product_equiv_tfn__graph"
K1 = "tfn_sort_kernel"
K2 = NAME + "_kernel"

N, E = 10000, 640000
NCH, CH = 256, 2500
BINM, BINS = 6711, 18
RECSTRIDE = 30720
WS_REC = 0
WS_TAB = NCH * RECSTRIDE
WS_CW = WS_TAB + NCH * 1024
WS_CG = WS_CW + 4096
WS_WM = WS_CG + 2048
WS_DBG = WS_WM + 8192
WS_END = WS_DBG + 2 * 257 * 128
OOB = 0x40000000


def f32(x):
    return "0x%08x" % struct.unpack("<I", struct.pack("<f", x))[0]


def v(n):
    return "v%d" % n


def vr(n, k):
    assert n % 2 == 0, "tuple must be even aligned: %d" % n
    return "v[%d:%d]" % (n, n + k - 1)


def s(n):
    return "s%d" % n


def sr(n, k):
    return "s[%d:%d]" % (n, n + k - 1)


class Asm:
    def __init__(self):
        self.l = []

    def __call__(self, t):
        self.l.append("    " + t)

    def lab(self, t):
        self.l.append(t + ":")

    def c(self, t):
        self.l.append("    ; " + t)

    def srd(self, d, b, nbytes):
        self("s_mov_b32 s%d, s%d" % (d, b))
        self("s_mov_b32 s%d, s%d" % (d + 1, b + 1))
        self("s_mov_b32 s%d, 0x%x" % (d + 2, nbytes))
        self("s_mov_b32 s%d, 0x20000" % (d + 3))

    def scan(self, r):
        for sh in (1, 2, 4, 8):
            self("v_add_u32_dpp v%d, v%d, v%d row_shr:%d row_mask:0xf bank_mask:0xf bound_ctrl:0" % (r, r, r, sh))
            self("s_nop 1")
        self("v_add_u32_dpp v%d, v%d, v%d row_bcast:15 row_mask:0xa bank_mask:0xf" % (r, r, r))
        self("s_nop 1")
        self("v_add_u32_dpp v%d, v%d, v%d row_bcast:31 row_mask:0xc bank_mask:0xf" % (r, r, r))


def nb_of(b):
    return min(N, -(-(b << BINS) // BINM))


def nb_magic():
    for sh in range(10, 22):
        m0 = int((2 ** BINS / BINM) * 2 ** sh)
        for m in (m0, m0 + 1, m0 - 1):
            for a in range((1 << sh) - 1, (1 << sh) - 2000, -1):
                if a < 0:
                    break
                if all(((b * m + a) >> sh) == nb_of(b) for b in range(257)):
                    return m, a, sh
    raise RuntimeError("no magic")


def flags(x):
    return (" " + x.replace("+", " ")) if x else ""


def stamp(a, o, idx):
    if o.stamps:
        a("s_memrealtime s[%d:%d]" % (80 + 2 * idx, 81 + 2 * idx))


def stamp_out(a, o, ws, region, nst, tidreg, t0, t1):
    if not o.stamps:
        return
    a("s_waitcnt lgkmcnt(0)")
    a("s_mov_b64 exec, 1")
    a("s_lshl_b32 s79, s2, 7")
    a("s_add_u32 s79, s79, 0x%x" % (WS_DBG + region * 257 * 128))
    a("v_mov_b32 v%d, 0" % t0)
    for i in range(nst):
        a("v_mov_b32 v%d, s%d" % (t1, 80 + 2 * i))
        a("buffer_store_dword v%d, v%d, %s, s79 offen offset:%d" % (t1, t0, sr(ws, 4), 4 * i))
    a("s_getreg_b32 s78, hwreg(HW_REG_XCC_ID)")
    a("v_mov_b32 v%d, s78" % t1)
    a("buffer_store_dword v%d, v%d, %s, s79 offen offset:%d" % (t1, t0, sr(ws, 4), 4 * 15))


def gen_k1(a, o):
    STAGE, HIST, OFFS = 0, 30720, 31744
    sDst, sSrc, sY, sW = 12, 16, 20, 24
    vT8, vT16, vL16 = 1, 2, 3
    vD, vS, vY = 4, 8, 12
    vB, vR, vO = 20, 24, 28
    vH, vP, vZ = 32, 36, 40
    vK, vOne, vT = 44, 48, 49
    a.lab(K1)
    a("s_cmp_gt_u32 s2, %d" % NCH)
    a("s_cbranch_scc1 K1_END")
    stamp(a, o, 0)
    a("s_load_dwordx4 s[4:7], s[0:1], 8")
    a("s_load_dwordx2 s[8:9], s[0:1], 24")
    a("s_load_dwordx2 s[10:11], s[0:1], 80")
    a("s_cmp_eq_u32 s2, %d" % NCH)
    a("s_cbranch_scc1 K1_CONST")
    a("v_lshlrev_b32 v%d, 3, v0" % vT8)
    a("v_lshlrev_b32 v%d, 4, v0" % vT16)
    a("v_and_b32 v%d, 0x3f0, v%d" % (vL16, vT16))
    for i in range(4):
        a("v_mov_b32 v%d, 0" % (vZ + i))
    a("v_mov_b32 v%d, 1" % vOne)
    a("ds_write_b128 v%d, %s offset:%d" % (vL16, vr(vZ, 4), HIST))
    a("s_mul_i32 s28, s2, %d" % (CH * 4))
    a("s_mul_i32 s29, s2, %d" % (CH * 8))
    a("s_add_u32 s30, s28, %d" % (CH * 2))
    a("s_add_u32 s31, s29, %d" % (CH * 4))
    a("v_cmp_gt_u32 vcc, %d, v0" % (CH // 4))
    a("s_mov_b64 s[32:33], vcc")
    a("s_waitcnt lgkmcnt(0)")
    a.srd(sDst, 6, E * 4)
    a("s_mov_b64 exec, s[32:33]")
    fl = flags(o.k1ld)
    a("buffer_load_dwordx2 %s, v%d, %s, s28 offen%s" % (vr(vD, 2), vT8, sr(sDst, 4), fl))
    a("buffer_load_dwordx2 %s, v%d, %s, s30 offen%s" % (vr(vD + 2, 2), vT8, sr(sDst, 4), fl))
    a.srd(sSrc, 4, E * 4)
    a("buffer_load_dwordx2 %s, v%d, %s, s28 offen%s" % (vr(vS, 2), vT8, sr(sSrc, 4), fl))
    a("buffer_load_dwordx2 %s, v%d, %s, s30 offen%s" % (vr(vS + 2, 2), vT8, sr(sSrc, 4), fl))
    a.srd(sY, 8, E * 8)
    a("buffer_load_dwordx4 %s, v%d, %s, s29 offen%s" % (vr(vY, 4), vT16, sr(sY, 4), fl))
    a("buffer_load_dwordx4 %s, v%d, %s, s31 offen%s" % (vr(vY + 4, 4), vT16, sr(sY, 4), fl))
    a.srd(sW, 10, WS_END)
    a("s_barrier")
    a("s_waitcnt vmcnt(4)")
    stamp(a, o, 1)
    for i in range(4):
        a("v_mul_u32_u24 v%d, %d, v%d" % (vB + i, BINM, vD + i))
    for i in range(4):
        a("v_lshrrev_b32 v%d, %d, v%d" % (vB + i, BINS - 2, vB + i))
    for i in range(4):
        a("v_and_b32 v%d, 0x3fc, v%d" % (vB + i, vB + i))
    for i in range(4):
        a("ds_add_rtn_u32 v%d, v%d, v%d offset:%d" % (vR + i, vB + i, vOne, HIST))
    a("v_lshlrev_b32 v%d, 21, v0" % vT)
    for i, add in enumerate((0, 1, CH // 2, CH // 2 + 1)):
        a("v_and_b32 v%d, 63, v%d" % (vK + i, vD + i))
        a("v_or_b32 v%d, v%d, v%d" % (vK + i, vT, vK + i))
        if add:
            a("v_add_u32 v%d, 0x%x, v%d" % (vK + i, add << 20, vK + i))
    a("s_waitcnt lgkmcnt(0)")
    a("s_barrier")
    stamp(a, o, 2)
    a("s_mov_b64 exec, -1")
    a("ds_read_b128 %s, v%d offset:%d" % (vr(vH, 4), vL16, HIST))
    a("s_waitcnt lgkmcnt(0)")
    a("v_add_u32 v%d, v%d, v%d" % (vP + 1, vH, vH + 1))
    a("v_add_u32 v%d, v%d, v%d" % (vP + 2, vP + 1, vH + 2))
    a("v_add_u32 v%d, v%d, v%d" % (vP + 3, vP + 2, vH + 3))
    a("v_mov_b32 v%d, v%d" % (vT, vP + 3))
    a("s_nop 1")
    a.scan(vT)
    a("v_sub_u32 v%d, v%d, v%d" % (vZ, vT, vP + 3))
    a("v_add_u32 v%d, v%d, v%d" % (vZ + 1, vZ, vH))
    a("v_add_u32 v%d, v%d, v%d" % (vZ + 2, vZ, vP + 1))
    a("v_add_u32 v%d, v%d, v%d" % (vZ + 3, vZ, vP + 2))
    a("ds_write_b128 v%d, %s offset:%d" % (vL16, vr(vZ, 4), OFFS))
    a("v_cmp_gt_u32 vcc, 64, v0")
    a("s_and_saveexec_b64 s[34:35], vcc")
    a("s_cbranch_execz K1_NOTAB")
    for i in range(4):
        a("v_lshl_or_b32 v%d, v%d, 16, v%d" % (vH + i, vH + i, vZ + i))
    a("s_lshl_b32 s36, s2, 10")
    a("s_add_u32 s36, s36, 0x%x" % WS_TAB)
    a("buffer_store_dwordx4 %s, v%d, %s, s36 offen%s" % (vr(vH, 4), vL16, sr(sW, 4), flags(o.k1st)))
    a.lab("K1_NOTAB")
    a("s_mov_b64 exec, s[32:33]")
    a("s_waitcnt lgkmcnt(0)")
    for i in range(4):
        a("ds_read_b32 v%d, v%d offset:%d" % (vO + i, vB + i, OFFS))
    a("s_waitcnt vmcnt(2)")
    for i in range(4):
        a("v_lshl_or_b32 v%d, v%d, 6, v%d" % (vK + i, vS + i, vK + i))
    a("s_waitcnt lgkmcnt(0)")
    for i in range(4):
        a("v_add_u32 v%d, v%d, v%d" % (vO + i, vO + i, vR + i))
    for i in range(4):
        a("v_mul_u32_u24 v%d, 12, v%d" % (vO + i, vO + i))
    for i in range(4):
        a("ds_write_b32 v%d, v%d offset:%d" % (vO + i, vK + i, STAGE + 8))
    a("s_waitcnt vmcnt(0)")
    stamp(a, o, 3)
    for i in range(4):
        a("ds_write2_b32 v%d, v%d, v%d offset0:0 offset1:1" % (vO + i, vY + 2 * i, vY + 2 * i + 1))
    a("s_mov_b64 exec, -1")
    a("s_mul_i32 s36, s2, %d" % RECSTRIDE)
    a("s_add_u32 s37, s36, 10240")
    a("s_add_u32 s38, s36, 20480")
    a("s_waitcnt lgkmcnt(0)")
    a("s_barrier")
    stamp(a, o, 4)
    for k in range(3):
        a("ds_read_b128 %s, v%d offset:%d" % (vr(vD + 4 * k, 4), vT16, STAGE + 10240 * k))
    for k in range(3):
        a("s_waitcnt lgkmcnt(%d)" % (2 - k))
        a("buffer_store_dwordx4 %s, v%d, %s, s%d offen%s" % (vr(vD + 4 * k, 4), vT16, sr(sW, 4), 36 + k, flags(o.k1st)))
    if o.stamps:
        stamp(a, o, 5)
        a("s_waitcnt vmcnt(0)")
        stamp(a, o, 6)
        a("v_cmp_gt_u32 vcc, 64, v0")
        a("s_cbranch_vccz K1_END")
        stamp_out(a, o, sW, 0, 7, 0, 50, 51)
    a.lab("K1_END")
    a("s_endpgm")

    a.lab("K1_CONST")
    a("s_load_dwordx4 s[40:43], s[0:1], 40")
    a("s_load_dwordx2 s[44:45], s[0:1], 56")
    a("v_lshrrev_b32 v1, 6, v0")
    a("v_and_b32 v2, 63, v0")
    a("v_readfirstlane_b32 s28, v1")
    a("v_and_b32 v3, 31, v0")
    a("v_bfe_u32 v4, v0, 5, 1")
    a("v_lshlrev_b32 v5, 4, v2")
    a("s_waitcnt lgkmcnt(0)")
    a.srd(sW, 10, WS_END)
    a("s_cmp_eq_u32 s28, 0")
    a("s_cbranch_scc1 K1_CW")
    a("s_cmp_eq_u32 s28, 1")
    a("s_cbranch_scc1 K1_CG")
    a("s_cmp_gt_u32 s28, 5")
    a("s_cbranch_scc1 K1_END")
    a.srd(12, 44, 64 * 64 * 2)
    a("s_sub_u32 s29, s28, 2")
    a("s_lshr_b32 s30, s29, 1")
    a("s_and_b32 s31, s29, 1")
    a("s_lshl_b32 s31, s31, 5")
    a("s_add_u32 s30, s30, s31")
    a("s_lshl_b32 s30, s30, 7")
    a("v_lshlrev_b32 v6, 11, v4")
    a("v_lshl_add_u32 v6, v3, 2, v6")
    for i in range(8):
        a("buffer_load_dword v%d, v6, s[12:15], s30 offen offset:%d" % (8 + i, 256 * i))
    a("s_mov_b32 s32, 0x05040100")
    a("s_mov_b32 s33, 0x07060302")
    a("s_lshl_b32 s34, s29, 11")
    a("s_add_u32 s34, s34, 0x%x" % WS_WM)
    a("s_waitcnt vmcnt(0)")
    for i in range(4):
        a("v_perm_b32 v%d, v%d, v%d, s32" % (16 + i, 8 + 2 * i + 1, 8 + 2 * i))
        a("v_perm_b32 v%d, v%d, v%d, s33" % (20 + i, 8 + 2 * i + 1, 8 + 2 * i))
    a("buffer_store_dwordx4 v[16:19], v5, %s, s34 offen" % sr(sW, 4))
    a("buffer_store_dwordx4 v[20:23], v5, %s, s34 offen offset:1024" % sr(sW, 4))
    a("s_endpgm")
    a.lab("K1_CG")
    a.srd(12, 42, 128)
    a("v_and_b32 v6, 3, v0")
    a("v_lshlrev_b32 v6, 1, v6")
    for i in range(4):
        for f in range(4):
            a("buffer_load_ushort v%d, v6, s[12:15], 0 offen offset:%d" % (8 + 4 * i + f, 32 * i + 8 * f))
    a("s_mov_b32 s34, 0x%x" % WS_CG)
    a("s_waitcnt vmcnt(0)")
    for i in range(8):
        a("v_lshl_or_b32 v%d, v%d, 16, v%d" % (24 + i, 8 + 2 * i + 1, 8 + 2 * i))
    a("buffer_store_dwordx4 v[24:27], v5, %s, s34 offen" % sr(sW, 4))
    a("buffer_store_dwordx4 v[28:31], v5, %s, s34 offen offset:1024" % sr(sW, 4))
    a("s_endpgm")
    a.lab("K1_CW")
    a.srd(12, 40, 16 * 64 * 2)
    a("v_lshlrev_b32 v6, 10, v4")
    a("v_lshl_add_u32 v6, v3, 2, v6")
    for i in range(8):
        a("buffer_load_dword v%d, v6, s[12:15], 0 offen offset:%d" % (8 + i, 128 * i))
    a("s_mov_b32 s30, %s" % f32(-1.4426950408889634))
    a("s_mov_b32 s31, 0xffff0000")
    a("s_mov_b32 s34, 0x%x" % WS_CW)
    a("s_waitcnt vmcnt(0)")
    for par in range(2):
        for i in range(8):
            if par == 0:
                a("v_lshlrev_b32 v%d, 16, v%d" % (16 + i, 8 + i))
            else:
                a("v_and_b32 v%d, s31, v%d" % (16 + i, 8 + i))
        for i in range(8):
            a("v_mul_f32 v%d, s30, v%d" % (24 + i, 16 + i))
        for i in range(4):
            a("v_cvt_pk_bf16_f32 v%d, v%d, v%d" % (32 + i, 24 + 2 * i, 24 + 2 * i + 1))
        for i in range(4):
            a("v_lshlrev_b32 v%d, 16, v%d" % (24 + 2 * i, 32 + i))
            a("v_and_b32 v%d, s31, v%d" % (24 + 2 * i + 1, 32 + i))
        for i in range(8):
            a("v_fma_f32 v%d, v%d, s30, -v%d" % (24 + i, 16 + i, 24 + i))
        for i in range(4):
            a("v_cvt_pk_bf16_f32 v%d, v%d, v%d" % (36 + i, 24 + 2 * i, 24 + 2 * i + 1))
        a("buffer_store_dwordx4 v[32:35], v5, %s, s34 offen offset:%d" % (sr(sW, 4), 2048 * par))
        a("buffer_store_dwordx4 v[36:39], v5, %s, s34 offen offset:%d" % (sr(sW, 4), 2048 * par + 1024))
        a("s_waitcnt vmcnt(0)")
    a("s_endpgm")
    return dict(vgpr=56, block=640, lds=32768, grid=NCH + 1)


def gen_k2(a, o):
    NW, P = o.nw, o.phases
    assert NW == 8
    CPW = NCH // NW
    NS = CPW // 4
    PM = (P * 65536) // N
    CAP = 4096 + 40 * P + 16
    HIST, OFFS, MAXW = 0, 1024, 2048
    RX = 2560
    RE = RX + 4 * CAP
    RY = RE + 4 * CAP
    ACC = (RY + 8 * CAP + 255) // 256 * 256
    ROW, KS = 1216, 144
    LDS = ACC + 41 * ROW
    assert RY < 65536 and LDS <= 163840
    sX, sE, sO, sW = 12, 16, 20, 24
    sWv, sBin, sNb, sNn, sLo, sWd, sMax, sT = 28, 29, 30, 31, 32, 33, 34, 35
    sPos, sMask, sCur, sN = 36, 37, 38, 39
    sM1, sM2 = 40, 56
    sT4, sT8, sA, sB, sC = 72, 73, 74, 75, 76
    X = 64
    De, Do = 128, 144
    W, CG = 160, 176
    ACCV, TP, AT = 184, 192, 208
    AE, EF, ST = 224, 228, 232
    vY = 236
    vXoff, vNode, vNodeN, vRawX, vEa = 238, 239, 240, 241, 242
    vL16, vL4, vHH, vQX, vQE, vQY, vA0, vA1, vFA, vPF = 243, 244, 245, 246, 247, 248, 249, 250, 251, 252
    vLane, vI, vG, vGE, vOne = 1, 2, 3, 4, 5
    TAB, ADR, CNT = 8, 16, 24
    T0 = 32
    xf, ef_f = flags(o.xfl), flags(o.effl)

    def tabloads():
        a("v_lshrrev_b32 v%d, 4, v%d" % (T0, vLane))
        a("v_lshlrev_b32 v%d, 10, v%d" % (T0, T0))
        a("s_mul_i32 s%d, s%d, %d" % (sA, sWv, CPW * 1024))
        a("s_lshl_b32 s%d, s%d, 2" % (sB, sBin))
        a("s_add_u32 s%d, s%d, s%d" % (sA, sA, sB))
        a("s_add_u32 s%d, s%d, 0x%x" % (sA, sA, WS_TAB))
        for k in range(NS):
            a("buffer_load_dword v%d, v%d, %s, s%d offen" % (TAB + k, T0, sr(sW, 4), sA))
            if k != NS - 1:
                a("s_add_u32 s%d, s%d, 4096" % (sA, sA))

    def zerohist():
        a("v_lshlrev_b32 v%d, 2, v%d" % (T0 + 1, vLane))
        a("v_mov_b32 v%d, 0" % (T0 + 2))
        for ph in range(P):
            a("ds_write_b32 v%d, v%d offset:%d" % (T0 + 1, T0 + 2, HIST + 256 * ph))

    a.lab(K2)
    a("s_cmp_ge_u32 s2, %d" % NCH)
    a("s_cbranch_scc1 K2_END")
    stamp(a, o, 0)
    a("s_load_dwordx2 s[10:11], s[0:1], 80")
    a("s_load_dwordx2 s[4:5], s[0:1], 0")
    a("s_load_dwordx2 s[6:7], s[0:1], 32")
    a("s_load_dwordx2 s[8:9], s[0:1], 64")
    a("v_lshrrev_b32 v%d, 6, v0" % T0)
    a("v_and_b32 v%d, 63, v0" % vLane)
    a("v_readfirstlane_b32 s%d, v%d" % (sWv, T0))
    a("s_and_b32 s%d, s2, 7" % sA)
    a("s_lshl_b32 s%d, s%d, 5" % (sA, sA))
    a("s_lshr_b32 s%d, s2, 3" % sB)
    a("s_add_u32 s%d, s%d, s%d" % (sBin, sA, sB))
    m, ad, sh = nb_magic()
    a("s_mul_i32 s%d, s%d, %d" % (sNb, sBin, m))
    a("s_add_u32 s%d, s%d, %d" % (sNb, sNb, ad))
    a("s_add_u32 s%d, s%d, %d" % (sNn, sNb, m))
    a("s_lshr_b32 s%d, s%d, %d" % (sNb, sNb, sh))
    a("s_lshr_b32 s%d, s%d, %d" % (sNn, sNn, sh))
    a("s_sub_u32 s%d, s%d, s%d" % (sNn, sNn, sNb))
    a("s_mov_b32 s%d, 0" % sLo)
    a("s_mov_b32 s%d, 32" % sWd)
    a("s_waitcnt lgkmcnt(0)")
    a.srd(sW, 10, WS_END)
    tabloads()
    a("v_lshlrev_b32 v%d, 4, v%d" % (T0 + 3, vLane))
    a("s_mov_b32 s%d, 0x%x" % (sA, WS_CW))
    for i in range(4):
        a("buffer_load_dwordx4 %s, v%d, %s, s%d offen offset:%d" % (vr(W + 4 * i, 4), T0 + 3, sr(sW, 4), sA, 1024 * i))
    a("s_mov_b32 s%d, 0x%x" % (sA, WS_CG))
    for i in range(2):
        a("buffer_load_dwordx4 %s, v%d, %s, s%d offen offset:%d" % (vr(CG + 4 * i, 4), T0 + 3, sr(sW, 4), sA, 1024 * i))
    a.srd(sX, 4, N * 512)
    a.srd(sE, 6, E * 32)
    a.srd(sO, 8, N * 512)
    zerohist()
    a("ds_write_b32 v%d, v%d offset:%d" % (T0 + 1, T0 + 2, MAXW))
    for i in range(4):
        a("v_mov_b32 v%d, 0" % (T0 + 4 + i))
    a("v_lshlrev_b32 v%d, 4, v0" % (T0 + 3))
    a("v_add_u32 v%d, %d, v%d" % (T0 + 3, ACC, T0 + 3))
    nz = -(-40 * ROW // (NW * 64 * 16))
    assert nz * NW * 64 * 16 <= 41 * ROW
    for i in range(nz):
        a("ds_write_b128 v%d, %s offset:%d" % (T0 + 3, vr(T0 + 4, 4), i * NW * 64 * 16))
    a("v_and_b32 v%d, 31, v%d" % (T0 + 8, vLane))
    a("v_lshlrev_b32 v%d, 4, v%d" % (vL16, T0 + 8))
    a("v_lshlrev_b32 v%d, 2, v%d" % (vL4, T0 + 8))
    a("v_lshrrev_b32 v%d, 5, v%d" % (T0 + 9, vLane))
    a("v_lshlrev_b32 v%d, 4, v%d" % (vHH, T0 + 9))
    a("v_and_b32 v%d, 15, v%d" % (T0 + 10, vLane))
    a("v_lshl_add_u32 v%d, v%d, 1, v%d" % (vQX, T0 + 10, T0 + 9))
    a("v_lshlrev_b32 v%d, 2, v%d" % (vQX, vQX))
    a("v_and_b32 v%d, 24, v%d" % (vQE, vLane))
    a("v_and_b32 v%d, 3, v%d" % (T0 + 11, vLane))
    a("v_lshl_add_u32 v%d, v%d, 1, v%d" % (vQE, T0 + 11, vQE))
    a("v_bfe_u32 v%d, v%d, 2, 1" % (T0 + 11, vLane))
    a("v_add_lshl_u32 v%d, v%d, v%d, 2" % (vQE, vQE, T0 + 11))
    a("v_and_b32 v%d, 1, v%d" % (T0 + 11, vLane))
    a("v_lshl_add_u32 v%d, v%d, 4, v%d" % (vQY, T0 + 11, T0 + 9))
    a("v_bfe_u32 v%d, v%d, 2, 3" % (T0 + 11, vLane))
    a("v_lshl_add_u32 v%d, v%d, 1, v%d" % (vQY, T0 + 11, vQY))
    a("v_lshlrev_b32 v%d, 3, v%d" % (vQY, vQY))
    a("v_lshrrev_b32 v%d, 4, v%d" % (T0 + 11, vLane))
    a("v_mul_u32_u24 v%d, %d, v%d" % (vG, RECSTRIDE, T0 + 11))
    a("v_mul_u32_u24 v%d, %d, v%d" % (vGE, CH * 32, T0 + 11))
    a("v_mov_b32 v%d, 1" % vOne)

    a.lab("K2_ROUND")
    a("v_and_b32 v%d, 15, v%d" % (vI, vLane))
    a("v_add_u32 v%d, s%d, v%d" % (vI, sLo, vI))
    a("v_add_u32 v%d, 16, v%d" % (T0 + 12, vI))
    a("s_mul_i32 s%d, s%d, %d" % (sA, sWv, CPW * RECSTRIDE))
    a("s_waitcnt vmcnt(6)")
    stamp(a, o, 1)
    for k in range(NS):
        a("v_and_b32 v%d, 0xffff, v%d" % (ADR + k, TAB + k))
        a("v_lshrrev_b32 v%d, 16, v%d" % (CNT + k, TAB + k))
        a("v_add_u32 v%d, v%d, v%d" % (ADR + k, ADR + k, vI))
        a("v_cmp_lt_u32 %s, v%d, v%d" % (sr(sM1 + 2 * k, 2), vI, CNT + k))
        a("v_mad_u32_u24 v%d, v%d, 12, v%d" % (ADR + k, ADR + k, vG))
        a("v_cmp_lt_u32 %s, v%d, v%d" % (sr(sM2 + 2 * k, 2), T0 + 12, CNT + k))
        a("s_mov_b64 exec, %s" % sr(sM1 + 2 * k, 2))
        a("buffer_load_dwordx3 %s, v%d, %s, s%d offen" % (vr(X + 4 * k, 3), ADR + k, sr(sW, 4), sA))
        a("s_mov_b64 exec, -1")
        a("s_add_u32 s%d, s%d, %d" % (sA, sA, 4 * RECSTRIDE))
    a("s_cmp_eq_u32 s%d, 32" % sWd)
    a("s_cbranch_scc1 K2_WIDE")
    for k in range(NS):
        a("s_mov_b64 %s, 0" % sr(sM2 + 2 * k, 2))
    a.lab("K2_WIDE")
    a("s_mul_i32 s%d, s%d, %d" % (sA, sWv, CPW * RECSTRIDE))
    for k in range(NS):
        a("s_mov_b64 exec, %s" % sr(sM2 + 2 * k, 2))
        a("s_cbranch_execz K2_NL%d" % k)
        a("buffer_load_dwordx3 %s, v%d, %s, s%d offen offset:192" % (vr(X + 4 * (NS + k), 3), ADR + k, sr(sW, 4), sA))
        a.lab("K2_NL%d" % k)
        a("s_add_u32 s%d, s%d, %d" % (sA, sA, 4 * RECSTRIDE))
    a("s_mov_b64 exec, -1")
    a("v_max3_u32 v%d, v%d, v%d, v%d" % (T0, CNT, CNT + 1, CNT + 2))
    a("v_max3_u32 v%d, v%d, v%d, v%d" % (T0 + 1, CNT + 3, CNT + 4, CNT + 5))
    a("v_max3_u32 v%d, v%d, v%d, v%d" % (T0, CNT + 6, CNT + 7, T0))
    a("v_max_u32 v%d, v%d, v%d" % (T0, T0, T0 + 1))
    a("v_mov_b32 v%d, 0" % (T0 + 1))
    npf = 0
    if o.pf:
        npf = -(-o.pf // (NW * 64))
        a("s_lshr_b32 s%d, s2, 3" % sB)
        a("s_mul_i32 s%d, s%d, %d" % (sB, sB, o.pf * 128))
        a("v_lshlrev_b32 v%d, 7, v0" % (T0 + 2))
        for i in range(npf):
            lim = o.pf - i * NW * 64
            if lim < NW * 64:
                a("v_cmp_gt_u32 vcc, %d, v0" % lim)
                a("s_mov_b64 exec, vcc")
            a("buffer_load_dword v%d, v%d, %s, s%d offen" % (vPF, T0 + 2, sr(sX, 4), sB))
            a("s_add_u32 s%d, s%d, %d" % (sB, sB, NW * 64 * 128))
        a("s_mov_b64 exec, -1")
    a("s_waitcnt lgkmcnt(0)")
    a("s_barrier")
    a("ds_max_u32 v%d, v%d offset:%d" % (T0 + 1, T0, MAXW))
    a("s_mul_i32 s%d, s%d, %d" % (sA, sWv, CPW * CH * 32))
    a("s_mov_b32 s%d, 0xfffc0" % sB)
    a("s_waitcnt vmcnt(%d)" % npf)
    stamp(a, o, 2)

    def slot_hist(k, kk):
        r = X + 4 * k
        a("v_subrev_u32 v%d, s%d, v%d" % (T0 + 2, sNb, r + 2))
        a("v_bfe_u32 v%d, v%d, 6, 14" % (T0 + 3, r + 2))
        a("v_and_b32 v%d, 63, v%d" % (T0 + 2, T0 + 2))
        if P > 1:
            a("v_mul_u32_u24 v%d, %d, v%d" % (T0 + 4, PM, T0 + 3))
            a("v_lshrrev_b32 v%d, 16, v%d" % (T0 + 4, T0 + 4))
            a("v_lshl_add_u32 v%d, v%d, 6, v%d" % (T0 + 4, T0 + 4, T0 + 2))
            a("v_lshlrev_b32 v%d, 2, v%d" % (r + 3, T0 + 4))
        else:
            a("v_lshlrev_b32 v%d, 2, v%d" % (r + 3, T0 + 2))
        a("ds_add_rtn_u32 v%d, v%d, v%d offset:%d" % (De + k, r + 3, vOne, HIST))
        a("v_lshrrev_b32 v%d, 20, v%d" % (T0 + 5, r + 2))
        a("v_lshl_add_u32 v%d, v%d, 5, v%d" % (T0 + 5, T0 + 5, vGE))
        a("v_add_u32 v%d, s%d, v%d" % (Do + k, sA, T0 + 5))
        a("v_lshl_or_b32 v%d, v%d, 9, v%d" % (r + 2, T0 + 3, T0 + 2))

    for k in range(NS):
        a("s_mov_b64 exec, %s" % sr(sM1 + 2 * k, 2))
        slot_hist(k, k)
        a("s_add_u32 s%d, s%d, %d" % (sA, sA, 4 * CH * 32))
    a("s_mul_i32 s%d, s%d, %d" % (sA, sWv, CPW * CH * 32))
    for k in range(NS):
        a("s_mov_b64 exec, %s" % sr(sM2 + 2 * k, 2))
        a("s_cbranch_execz K2_NH%d" % k)
        slot_hist(NS + k, k)
        a.lab("K2_NH%d" % k)
        a("s_add_u32 s%d, s%d, %d" % (sA, sA, 4 * CH * 32))
    a("s_mov_b64 exec, -1")
    a("v_lshlrev_b32 v%d, 2, v%d" % (T0 + 1, vLane))
    a("v_mov_b32 v%d, 0" % T0)
    a("s_waitcnt lgkmcnt(0)")
    a("s_barrier")
    stamp(a, o, 3)
    H, EV, SC = T0 + 4, T0 + 8, T0 + 12
    for ph in range(P):
        a("ds_read_b32 v%d, v%d offset:%d" % (H + ph, T0 + 1, HIST + 256 * ph))
    a("ds_read_b32 v%d, v%d offset:%d" % (T0 + 2, T0, MAXW))
    a("s_waitcnt lgkmcnt(0)")
    a("v_readfirstlane_b32 s%d, v%d" % (sMax, T0 + 2))
    for ph in range(P):
        a("v_add_u32 v%d, 1, v%d" % (EV + ph, H + ph))
        a("v_and_b32 v%d, -2, v%d" % (EV + ph, EV + ph))
        a("v_mov_b32 v%d, v%d" % (SC + ph, EV + ph))
    a("s_nop 1")
    steps = [("row_shr:%d row_mask:0xf bank_mask:0xf bound_ctrl:0" % x) for x in (1, 2, 4, 8)]
    steps += ["row_bcast:15 row_mask:0xa bank_mask:0xf", "row_bcast:31 row_mask:0xc bank_mask:0xf"]
    for st in steps:
        for ph in range(P):
            a("v_add_u32_dpp v%d, v%d, v%d %s" % (SC + ph, SC + ph, SC + ph, st))
        if P < 3:
            a("s_nop %d" % (2 - P))
    a("s_mov_b32 s%d, 0" % sT)
    for ph in range(P):
        a("v_readlane_b32 s%d, v%d, 63" % (sA, SC + ph))
        a("v_sub_u32 v%d, v%d, v%d" % (SC + ph, SC + ph, EV + ph))
        if ph:
            a("v_add_u32 v%d, s%d, v%d" % (SC + ph, sT, SC + ph))
        a("s_add_u32 s%d, s%d, s%d" % (sT, sT, sA))
    a("s_cmp_ge_u32 s%d, %d" % (sT, CAP))
    a("s_cbranch_scc1 K2_NARROW")
    for ph in range(P):
        a("ds_write_b32 v%d, v%d offset:%d" % (T0 + 1, SC + ph, OFFS + 256 * ph))
    a("v_min_u32 v%d, 40, v%d" % (T0 + 2, vLane))
    a("v_or_b32 v%d, 0x%x, v%d" % (T0 + 2, OOB, T0 + 2))
    a("v_mov_b32 v%d, 0x%x" % (T0 + 3, OOB))
    a("v_mov_b32 v%d, 0" % (T0 + 16))
    a("v_mov_b32 v%d, 0" % (T0 + 17))
    a("s_mov_b32 s%d, 0x80000000" % sB)
    for ph in range(P):
        a("v_add_lshl_u32 v%d, v%d, v%d, 2" % (T0 + 18, SC + ph, H + ph))
        a("v_cmp_ne_u32 vcc, v%d, v%d" % (H + ph, EV + ph))
        a("v_lshlrev_b32 v%d, 1, v%d" % (T0 + 19, T0 + 18))
        if ph == P - 1:
            a("s_or_b32 vcc_hi, vcc_hi, s%d" % sB)
        a("s_mov_b64 exec, vcc")
        a("ds_write_b32 v%d, v%d offset:%d" % (T0 + 18, T0 + 2, RX))
        a("ds_write_b32 v%d, v%d offset:%d" % (T0 + 18, T0 + 3, RE))
        a("ds_write_b64 v%d, %s offset:%d" % (T0 + 19, vr(T0 + 16, 2), RY))
        a("s_mov_b64 exec, -1")
    a("s_waitcnt lgkmcnt(0)")
    OF = TP
    for k in range(NS):
        a("s_mov_b64 exec, %s" % sr(sM1 + 2 * k, 2))
        a("ds_read_b32 v%d, v%d offset:%d" % (OF + k, X + 4 * k + 3, OFFS))
    for k in range(NS):
        a("s_mov_b64 exec, %s" % sr(sM2 + 2 * k, 2))
        a("s_cbranch_execz K2_NO%d" % k)
        a("ds_read_b32 v%d, v%d offset:%d" % (OF + NS + k, X + 4 * (NS + k) + 3, OFFS))
        a.lab("K2_NO%d" % k)
    a("s_waitcnt lgkmcnt(0)")

    def slot_put(k):
        r = X + 4 * k
        a("v_add_lshl_u32 v%d, v%d, v%d, 2" % (OF + k, OF + k, De + k))
        a("v_lshlrev_b32 v%d, 1, v%d" % (r + 3, OF + k))
        a("ds_write_b32 v%d, v%d offset:%d" % (OF + k, r + 2, RX))
        a("ds_write_b32 v%d, v%d offset:%d" % (OF + k, Do + k, RE))
        a("ds_write_b64 v%d, %s offset:%d" % (r + 3, vr(r, 2), RY))

    for k in range(NS):
        a("s_mov_b64 exec, %s" % sr(sM1 + 2 * k, 2))
        slot_put(k)
    for k in range(NS):
        a("s_mov_b64 exec, %s" % sr(sM2 + 2 * k, 2))
        a("s_cbranch_execz K2_NP%d" % k)
        slot_put(NS + k)
        a.lab("K2_NP%d" % k)
    a("s_mov_b64 exec, -1")
    a("s_lshl_b32 s%d, s%d, 5" % (sPos, sWv))
    a("s_lshl_b32 s%d, s%d, 2" % (sT4, sT))
    a("s_lshl_b32 s%d, s%d, 3" % (sT8, sT))
    a("s_waitcnt lgkmcnt(0)")
    a("s_barrier")
    stamp(a, o, 4)
    a("s_cmp_ge_u32 s%d, s%d" % (sPos, sT))
    a("s_cbranch_scc1 K2_DONE")

    TS = NW * 32

    def rd4(dst, q, ahead, region, t):
        if ahead:
            a("s_add_u32 s%d, s%d, %d" % (sA, sPos, ahead * TS))
            a("s_lshl_b32 s%d, s%d, 2" % (sA, sA))
        else:
            a("s_lshl_b32 s%d, s%d, 2" % (sA, sPos))
        a("v_add_u32 v%d, s%d, v%d" % (t, sA, q))
        a("v_min_u32 v%d, s%d, v%d" % (t, sT4, t))
        a("ds_read_b32 v%d, v%d offset:%d" % (dst, t, region))

    def rdY(ahead, t):
        if ahead:
            a("s_add_u32 s%d, s%d, %d" % (sB, sPos, ahead * TS))
            a("s_lshl_b32 s%d, s%d, 3" % (sB, sB))
        else:
            a("s_lshl_b32 s%d, s%d, 3" % (sB, sPos))
        a("v_add_u32 v%d, s%d, v%d" % (t, sB, vQY))
        a("v_min_u32 v%d, s%d, v%d" % (t, sT8, t))
        a("ds_read_b64 %s, v%d offset:%d" % (vr(vY, 2), t, RY))

    def amfma():
        for i in range(4):
            a("v_mfma_f32_4x4x4_16b_bf16 %s, %s, %s, 0" % (vr(AT + 4 * i, 4), vr(vY, 2), vr(CG + 2 * i, 2)))

    def acvt(r):
        a("v_cvt_pk_bf16_f32 v%d, v%d, v%d" % (AE + 2 * r, AT + r, AT + 4 + r))
        a("v_cvt_pk_bf16_f32 v%d, v%d, v%d" % (AE + 2 * r + 1, AT + 8 + r, AT + 12 + r))

    def xaddr(st, off):
        t = vA0 if st % 2 == 0 else vA1
        a("v_add_u32_dpp v%d, v%d, v%d row_newbcast:%d row_mask:0xf bank_mask:0xf" % (t, off, vL16, st))
        return t

    def xload(st, t):
        a("buffer_load_dwordx4 %s, v%d, %s, 0 offen%s" % (vr(X + 4 * st, 4), t, sr(sX, 4), xf))

    def nodes():
        a("v_mov_b32_dpp v%d, v%d row_shr:1 row_mask:0xf bank_mask:0xf" % (vFA, vNodeN))
        a("v_mov_b32 v%d, v%d" % (vNode, vNodeN))
        a("v_cmp_ne_u32 vcc, v%d, v%d" % (vFA, vNodeN))
        a("v_and_b32 v%d, 0x1ff, v%d" % (vNodeN, vRawX))
        a("s_or_b32 s%d, vcc_lo, 1" % sMask)

    rd4(T0, vQE, 0, RE, T0 + 4)
    rd4(T0 + 1, vQX, 0, RX, T0 + 5)
    rdY(0, T0 + 6)
    rd4(vRawX, vQX, 1, RX, T0 + 7)
    rd4(vEa, vQE, 1, RE, T0 + 8)
    a("s_waitcnt lgkmcnt(3)")
    a("v_add_u32 v%d, v%d, v%d" % (T0, T0, vHH))
    a("v_and_b32 v%d, 0xfffffe00, v%d" % (vXoff, T0 + 1))
    a("buffer_load_dwordx4 %s, v%d, %s, 0 offen%s" % (vr(EF, 4), T0, sr(sE, 4), ef_f))
    a("v_and_b32 v%d, 0x1ff, v%d" % (vNodeN, T0 + 1))
    for st in range(16):
        t = xaddr(st, vXoff)
        xload(st, t)
    a("s_waitcnt lgkmcnt(0)")
    amfma()
    nodes()
    a("v_and_b32 v%d, 0xfffffe00, v%d" % (vXoff, vRawX))
    a("v_add_u32 v%d, v%d, v%d" % (vEa, vEa, vHH))
    for i in range(4):
        a("v_mov_b64 %s, 0" % vr(ACCV + 2 * i, 2))
    acvt(0)
    acvt(1)
    a("s_mov_b32 s%d, %d" % (sCur, ACC + 40 * ROW))

    def fma(st):
        p = TP + 8 * (st % 2)
        u, hi = st // 2, st % 2
        for cpar, D in ((0, De), (1, Do)):
            for hf in range(2):
                a("v_pk_fma_f32 %s, %s, %s, %s op_sel:[0,%d,0] op_sel_hi:[1,%d,1]" % (
                    vr(ACCV + 4 * cpar + 2 * hf, 2), vr(p + 4 * cpar + 2 * hf, 2), vr(D + 2 * u, 2),
                    vr(ACCV + 4 * cpar + 2 * hf, 2), hi, hi))

    a.lab("K2_TILE")
    a("s_waitcnt vmcnt(16)")
    a("v_mfma_f32_32x32x16_bf16 %s, %s, %s, 0" % (vr(De, 16), vr(EF, 4), vr(W, 4)))
    a("v_mfma_f32_32x32x16_bf16 %s, %s, %s, %s" % (vr(De, 16), vr(EF, 4), vr(W + 4, 4), vr(De, 16)))
    a("v_mfma_f32_32x32x16_bf16 %s, %s, %s, 0" % (vr(Do, 16), vr(EF, 4), vr(W + 8, 4)))
    a("v_mfma_f32_32x32x16_bf16 %s, %s, %s, %s" % (vr(Do, 16), vr(EF, 4), vr(W + 12, 4), vr(Do, 16)))
    a("buffer_load_dwordx4 %s, v%d, %s, 0 offen%s" % (vr(EF, 4), vEa, sr(sE, 4), ef_f))
    rdY(1, T0)
    rd4(vRawX, vQX, 2, RX, T0 + 1)
    rd4(vEa, vQE, 2, RE, T0 + 2)
    a("v_exp_f32 v%d, v%d" % (ST, De))
    a("v_exp_f32 v%d, v%d" % (ST + 1, De + 1))
    a("s_nop 0")
    a("v_pk_add_f32 %s, %s, 1.0 op_sel_hi:[1,0]" % (vr(ST, 2), vr(ST, 2)))
    a("v_rcp_f32 v%d, v%d" % (ST, ST))
    a("v_rcp_f32 v%d, v%d" % (ST + 1, ST + 1))
    a("s_nop 0")
    a("v_pk_mul_f32 %s, %s, %s" % (vr(De, 2), vr(De, 2), vr(ST, 2)))
    for st in range(16):
        p = TP + 8 * (st % 2)
        ae = AE + 2 * (st // 8)
        if st == 15:
            D = None
        elif st % 2 == 0:
            D = Do + st
        else:
            D = De + st + 1
        a("s_waitcnt vmcnt(16)")
        a("v_mfma_f32_4x4x4_16b_bf16 %s, %s, %s, 0 cbsz:3 abid:%d" % (vr(p, 4), vr(ae, 2), vr(X + 4 * st, 2), st % 8))
        a("v_mfma_f32_4x4x4_16b_bf16 %s, %s, %s, 0 cbsz:3 abid:%d" % (vr(p + 4, 4), vr(ae, 2), vr(X + 4 * st + 2, 2), st % 8))
        t = xaddr(st, vXoff)
        if D is not None:
            a("v_exp_f32 v%d, v%d" % (ST, D))
        xload(st, t)
        if D is not None:
            a("v_exp_f32 v%d, v%d" % (ST + 1, D + 1))
        if st:
            a("s_bitcmp1_b32 s%d, %d" % (sMask, st - 1))
        else:
            a("s_nop 0")
        if D is not None:
            a("v_pk_add_f32 %s, %s, 1.0 op_sel_hi:[1,0]" % (vr(ST, 2), vr(ST, 2)))
        if st:
            a("s_cbranch_scc1 K2_FL%d" % (st - 1))
            a.lab("K2_RT%d" % (st - 1))
        if D is not None:
            a("v_rcp_f32 v%d, v%d" % (ST, ST))
            a("v_rcp_f32 v%d, v%d" % (ST + 1, ST + 1))
        if st:
            fma(st - 1)
        else:
            a("s_nop 0")
        if D is not None:
            a("v_pk_mul_f32 %s, %s, %s" % (vr(D, 2), vr(D, 2), vr(ST, 2)))
        if st == 8:
            a("s_waitcnt lgkmcnt(0)")
            amfma()
            a("v_add_u32 v%d, v%d, v%d" % (vEa, vEa, vHH))
        if st == 10:
            acvt(0)
    acvt(1)
    a("s_bitcmp1_b32 s%d, 15" % sMask)
    a("v_and_b32 v%d, 0xfffffe00, v%d" % (vXoff, vRawX))
    a("s_cbranch_scc1 K2_FL15")
    a.lab("K2_RT15")
    fma(15)
    nodes()
    a("s_add_u32 s%d, s%d, %d" % (sPos, sPos, TS))
    a("s_cmp_lt_u32 s%d, s%d" % (sPos, sT))
    a("s_cbranch_scc1 K2_TILE")

    def flush():
        a("v_add_u32 v%d, s%d, v%d" % (vFA, sCur, vL4))
        for k in range(8):
            a("ds_add_f32 v%d, v%d offset:%d" % (vFA, ACCV + k, KS * k))

    flush()
    a.lab("K2_DONE")
    stamp(a, o, 5)
    a("s_add_u32 s%d, s%d, s%d" % (sLo, sLo, sWd))
    a("s_cmp_lt_u32 s%d, s%d" % (sLo, sMax))
    a("s_cbranch_scc1 K2_MORE")
    WM = X
    RD = X + 32
    a("s_waitcnt vmcnt(0)")
    a("s_cmp_gt_u32 s%d, 4" % sWv)
    a("s_cbranch_scc1 K2_EOUT")
    a("v_lshlrev_b32 v%d, 4, v%d" % (T0, vLane))
    a("s_mov_b32 s%d, 0x%x" % (sA, WS_WM))
    a("s_mov_b32 s%d, 0x%x" % (sB, WS_WM + 4096))
    for i in range(8):
        a("buffer_load_dwordx4 %s, v%d, %s, s%d offen offset:%d" % (
            vr(WM + 4 * i, 4), T0, sr(sW, 4), sA if i < 4 else sB, 1024 * (i % 4)))
    a("v_bfe_u32 v%d, v%d, 2, 3" % (T0 + 1, vLane))
    a("v_mul_u32_u24 v%d, %d, v%d" % (T0 + 1, ROW, T0 + 1))
    a("v_and_b32 v%d, 3, v%d" % (T0 + 2, vLane))
    a("v_mul_u32_u24 v%d, %d, v%d" % (T0 + 2, KS, T0 + 2))
    a("v_lshl_add_u32 v%d, v%d, 1, v%d" % (T0 + 2, vHH, T0 + 2))
    a("s_mul_i32 s%d, s%d, %d" % (sA, sWv, 8 * ROW))
    a("s_add_u32 s%d, s%d, %d" % (sA, sA, ACC))
    a("v_add3_u32 v%d, v%d, v%d, s%d" % (T0 + 1, T0 + 1, T0 + 2, sA))
    a("v_lshrrev_b32 v%d, 4, v%d" % (T0 + 3, vHH))
    a("s_lshl_b32 s%d, s%d, 3" % (sA, sWv))
    a("v_add_u32 v%d, s%d, v%d" % (T0 + 3, sA, T0 + 3))
    a("v_add_u32 v%d, s%d, v%d" % (T0 + 4, sNb, T0 + 3))
    a("v_lshl_add_u32 v%d, v%d, 9, v%d" % (T0 + 4, T0 + 4, vL16))
    a("s_mov_b32 s%d, %s" % (sA, f32(-0.6931471805599453)))
    a("s_mov_b32 s%d, s%d" % (sB, sA))
    a("s_waitcnt lgkmcnt(0)")
    a("s_barrier")
    stamp(a, o, 6)
    for ks in range(4):
        for hf in range(2):
            a("ds_read_b128 %s, v%d offset:%d" % (vr(RD + 8 * ks + 4 * hf, 4), T0 + 1,
                                                 (ks // 2) * 4 * KS + (ks % 2) * 64 + 16 * hf))
    for ks in range(4):
        a("s_waitcnt lgkmcnt(%d)" % (6 - 2 * ks))
        for i in range(4):
            a("v_pk_mul_f32 %s, %s, %s" % (vr(RD + 8 * ks + 2 * i, 2), vr(RD + 8 * ks + 2 * i, 2), sr(sA, 2)))
        for i in range(4):
            a("v_cvt_pk_bf16_f32 v%d, v%d, v%d" % (TP + 4 * ks + i, RD + 8 * ks + 2 * i, RD + 8 * ks + 2 * i + 1))
    a("s_waitcnt vmcnt(0)")
    for ks in range(4):
        for dp, D in ((0, De), (1, Do)):
            a("v_mfma_f32_32x32x16_bf16 %s, %s, %s, %s" % (
                vr(D, 16), vr(TP + 4 * ks, 4), vr(WM + 8 * ks + 4 * dp, 4), vr(D, 16) if ks else "0"))
    for g in range(4):
        a("v_add_u32 v%d, %d, v%d" % (T0 + 5, 2 * g, T0 + 3))
        a("v_cmp_gt_u32 %s, s%d, v%d" % (sr(sM1 + 2 * g, 2), sNn, T0 + 5))
    a("s_nop 4")
    for g in range(4):
        o4 = RD + 4 * g
        a("v_cvt_pk_bf16_f32 v%d, v%d, v%d" % (o4, De + 4 * g, De + 4 * g + 1))
        a("v_cvt_pk_bf16_f32 v%d, v%d, v%d" % (o4 + 1, De + 4 * g + 2, De + 4 * g + 3))
        a("v_cvt_pk_bf16_f32 v%d, v%d, v%d" % (o4 + 2, Do + 4 * g, Do + 4 * g + 1))
        a("v_cvt_pk_bf16_f32 v%d, v%d, v%d" % (o4 + 3, Do + 4 * g + 2, Do + 4 * g + 3))
        a("s_mov_b64 exec, %s" % sr(sM1 + 2 * g, 2))
        a("buffer_store_dwordx4 %s, v%d, %s, 0 offen offset:%d%s" % (vr(o4, 4), T0 + 4, sr(sO, 4), 1024 * g, flags(o.ofl)))
        a("s_mov_b64 exec, -1")
    if o.stamps:
        stamp(a, o, 7)
        a("s_waitcnt vmcnt(0)")
        stamp(a, o, 8)
        a("s_cmp_lg_u32 s%d, 0" % sWv)
        a("s_cbranch_scc1 K2_END")
        stamp_out(a, o, sW, 1, 9, 0, T0, T0 + 1)
    a.lab("K2_END")
    a("s_endpgm")
    a.lab("K2_EOUT")
    a("s_waitcnt lgkmcnt(0)")
    a("s_barrier")
    a("s_endpgm")

    a.lab("K2_MORE")
    a("s_waitcnt vmcnt(0) lgkmcnt(0)")
    a("s_barrier")
    tabloads()
    zerohist()
    a("s_mov_b32 s%d, 32" % sWd)
    a("s_waitcnt vmcnt(0)")
    a("s_branch K2_ROUND")
    a.lab("K2_NARROW")
    a("s_barrier")
    zerohist()
    a("s_mov_b32 s%d, 16" % sWd)
    a("s_waitcnt vmcnt(0)")
    a("s_branch K2_ROUND")

    for st in range(16):
        a.lab("K2_FL%d" % st)
        a("v_readlane_b32 s%d, v%d, %d" % (sN, vNode, st))
        flush()
        for i in range(4):
            a("v_mov_b64 %s, 0" % vr(ACCV + 2 * i, 2))
        a("s_mul_i32 s%d, s%d, %d" % (sCur, sN, ROW))
        a("s_add_u32 s%d, s%d, %d" % (sCur, sCur, ACC))
        a("s_cmp_lg_u32 s%d, 40" % sN)
        a("s_cbranch_scc1 K2_RT%d" % st)
        a("s_branch K2_DONE")
    return dict(vgpr=256, block=NW * 64, lds=LDS, grid=NCH)


HEADER = """; Kernarg layout for this problem (88 bytes, ptrs only, base s[0:1]):
"""


def desc(name, info):
    acc = -(-info["vgpr"] // 4) * 4
    return """.p2align 6
.amdhsa_kernel %s
  .amdhsa_next_free_vgpr %d
  .amdhsa_next_free_sgpr 102
  .amdhsa_accum_offset %d
  .amdhsa_group_segment_fixed_size 0
  .amdhsa_kernarg_size 88
  .amdhsa_user_sgpr_count 2
  .amdhsa_user_sgpr_kernarg_segment_ptr 1
  .amdhsa_system_sgpr_workgroup_id_x 1
  .amdhsa_float_denorm_mode_32 3
.end_amdhsa_kernel
""" % (name, info["vgpr"], acc)


def build(o):
    a1, a2 = Asm(), Asm()
    i1 = gen_k1(a1, o)
    i2 = gen_k2(a2, o)
    out = HEADER
    out += "; @launch kernel=%s grid=(%d,1,1) block=(%d,1,1) lds=%d\n" % (K1, i1["grid"], i1["block"], i1["lds"])
    out += "; @launch kernel=%s grid=(%d,1,1) block=(%d,1,1) lds=%d\n" % (K2, i2["grid"], i2["block"], i2["lds"])
    out += '.amdgcn_target "amdgcn-amd-amdhsa--gfx950"\n.text\n'
    for nm, a in ((K1, a1), (K2, a2)):
        out += ".globl %s\n.p2align 8\n.type %s,@function\n" % (nm, nm)
        out += "\n".join(a.l) + "\n"
    out += '.section .rodata,"a"\n' + desc(K1, i1) + desc(K2, i2)
    return out


def parser():
    p = argparse.ArgumentParser()
    p.add_argument("-o", default="cdna_kernels/%s.s" % NAME)
    p.add_argument("--nw", type=int, default=8)
    p.add_argument("--phases", type=int, default=2)
    p.add_argument("--pf", type=int, default=0, help="x lines prefetched per workgroup")
    p.add_argument("--k1ld", default="nt")
    p.add_argument("--k1st", default="")
    p.add_argument("--xfl", default="")
    p.add_argument("--effl", default="nt")
    p.add_argument("--ofl", default="")
    p.add_argument("--stamps", type=int, default=0)
    return p


if __name__ == "__main__":
    o = parser().parse_args()
    open(o.o, "w").write(build(o))
    print("wrote", o.o)
```
